```python
import torch

def _softmax(x, axis=-1):
    return torch.softmax(x, dim=axis)
def _gelu(x):
    return torch.nn.functional.gelu(x, approximate="tanh")
def _silu(x):
    return torch.nn.functional.silu(x)
def _sigmoid(x):
    return torch.sigmoid(x)
def _layernorm(x, axis=-1, eps=1e-5):
    m = x.mean(dim=axis, keepdim=True)
    v = x.var(dim=axis, keepdim=True, unbiased=False)
    return (x - m) / torch.sqrt(v + eps)
def _scatter_add(tgt, idx, src, axis=0):
    return tgt.clone().index_add_(axis, idx, src)
def _segment_sum(src, seg, n):
    out = torch.zeros((n,) + src.shape[1:], dtype=src.dtype)
    return out.index_add_(0, seg, src)
def _pad(x, pw):
    flat = tuple(v for pair in reversed(pw) for v in pair)
    return torch.nn.functional.pad(x, flat)

kernel_name = 'standalone__softmax_full_bidir__sampling'

def setup_inputs():

    _w = (lambda a: (lambda t: t.to(torch.bfloat16) if t.is_floating_point() else t)(torch.as_tensor(a)))
    B, H, Sq, Skv, Dh = 8, 32, 1, 4096, 192
    return {
        "q": _w((lambda *s: torch.randn(*s, dtype=torch.bfloat16) * 0.8)(B, H, Sq, Dh)),
        "k": _w((lambda *s: torch.randn(*s, dtype=torch.bfloat16) * 0.8)(B, H, Skv, Dh)),
        "v": _w((lambda *s: torch.randn(*s, dtype=torch.bfloat16) * 0.05)(B, H, Skv, Dh)),
    }

def reference(q, k, v):
    scale = q.shape[-1] ** -0.5
    scores = torch.einsum('bhqd,bhkd->bhqk', q, k) * scale
    attn = _softmax(scores, axis=-1)
    return torch.einsum('bhqk,bhkd->bhqd', attn, v)
```

```python
import math, argparse, struct

NAME = "standalone__softmax_full_bidir__sampling_kernel"
NH, SK, DH = 256, 4096, 192
ROWB = DH * 2
HEADB = SK * ROWB
GRPB = 8 * ROWB
SCALE = (DH ** -0.5) * math.log2(math.e)

def f2u(f): return struct.unpack("<I", struct.pack("<f", f))[0]

class Asm:
    def __init__(self): self.l = []
    def __call__(self, s=""):
        for x in s.split("\n"): self.l.append(x)
    def text(self): return "\n".join(self.l) + "\n"

def gen(W=4, G=4, phases=((3, 0),), flags="nt", ldsmin=90000, stamp=False, contig=False, newepi=True, peel=True, sgprs=40, phases2=None, xmask=1):
    E = 2 * G
    ntile = SK // (8 * G)
    assert ntile % W == 0
    N = ntile // W
    tileb = 8 * G * ROWB
    wstride, istride = (N * tileb, tileb) if contig else (tileb, W * tileb)
    fixed = sum(n for _, n, _k in phases)
    phases = [(r, n if n else N - fixed, k) for r, n, k in phases]
    assert sum(p[1] for p in phases) == N and all(p[1] > 0 for p in phases)
    assert all(1 <= p[0] <= E for p in phases)
    a = Asm()
    vOff = 1
    vM, vL, vAl, vMc = 6, 7, 8, 9
    vS = 10
    vQ = (vS + G + 3) // 4 * 4
    vAcc = vQ + 12
    vK = vAcc + 24
    vV = vK + 12 * G
    vEnd = vV + 12 * G
    vLds = vEnd
    nv = max(vEnd + 1, vK + 26, 12 + 4 * W + 4)
    nv = (nv + 7) // 8 * 8
    lds = max(W * 196 * 4, ldsmin)
    sK, sV, sQ = 4, 8, 12
    sBase, sOff, sCnt, sC, sW = 16, 17, 18, 19, 20
    a(f"; @launch grid=({NH},1,1) block=({64*W},1,1) lds={lds}")
    a('.amdgcn_target "amdgcn-amd-amdhsa--gfx950"')
    a(".text")
    a(f".globl {NAME}")
    a(".p2align 8")
    a(f".type {NAME},@function")
    a(f"{NAME}:")
    a(f"  s_cmp_ge_u32 s2, {NH}")
    a("  s_cbranch_scc1 L_end")
    a("  s_load_dwordx4 s[24:27], s[0:1], 0")
    a("  s_load_dwordx4 s[28:31], s[0:1], 16")
    if stamp: a("  s_memrealtime s[34:35]")
    a("  v_lshrrev_b32 v2, 6, v0")
    a("  v_and_b32 v3, 63, v0")
    a(f"  v_readfirstlane_b32 s{sW}, v2")
    a("  v_lshrrev_b32 v4, 3, v3")
    a("  v_and_b32 v5, 7, v3")
    a(f"  v_lshlrev_b32 v2, 5, v5")
    a(f"  v_lshl_add_u32 v{vLds}, v4, 2, v2")
    a(f"  v_mul_u32_u24 v4, {ROWB}, v4")
    a("  v_lshlrev_b32 v5, 4, v5")
    a(f"  v_add_u32 v{vOff}, v4, v5")
    a(f"  s_mul_i32 s21, s2, {HEADB}")
    a(f"  s_mul_i32 s{sBase}, s{sW}, {wstride}")
    a(f"  s_mul_i32 s22, s2, {ROWB}")
    a(f"  s_mul_i32 s23, s{sW}, {196*4}")
    a(f"  v_add_u32 v{vLds}, s23, v{vLds}")
    a(f"  s_mov_b32 s{sK+2}, {HEADB}")
    a(f"  s_mov_b32 s{sK+3}, 0x00020000")
    a(f"  s_mov_b32 s{sV+2}, {HEADB}")
    a(f"  s_mov_b32 s{sV+3}, 0x00020000")
    a(f"  s_mov_b32 s{sQ+2}, {ROWB}")
    a(f"  s_mov_b32 s{sQ+3}, 0x00020000")
    a("  s_waitcnt lgkmcnt(0)")
    a(f"  s_add_u32 s{sQ}, s24, s22")
    a(f"  s_addc_u32 s{sQ+1}, s25, 0")
    a(f"  s_and_b32 s{sQ+1}, s{sQ+1}, 0xffff")
    a(f"  s_add_u32 s{sK}, s26, s21")
    a(f"  s_addc_u32 s{sK+1}, s27, 0")
    a(f"  s_and_b32 s{sK+1}, s{sK+1}, 0xffff")
    for c in range(3):
        off = f" offset:{c*128}" if c else ""
        a(f"  buffer_load_dwordx4 v[{vQ+4*c}:{vQ+4*c+3}], v5, s[{sQ}:{sQ+3}], 0 offen{off}")
    a(f"  s_add_u32 s{sV}, s28, s21")
    a(f"  s_addc_u32 s{sV+1}, s29, 0")
    a(f"  s_and_b32 s{sV+1}, s{sV+1}, 0xffff")

    def issue(ev):
        nxt, e = divmod(ev, E)
        srd, reg, g = (sK, vK, e) if e < G else (sV, vV, e - G)
        off = g * GRPB + nxt * istride
        a(f"  s_add_u32 s{sOff}, s{sBase}, 0x{off:x}")
        for c in range(3):
            r = reg + 12 * g + 4 * c
            o = f" offset:{c*128}" if c else ""
            a(f"  buffer_load_dwordx4 v[{r}:{r+3}], v{vOff}, s[{srd}:{srd+3}], s{sOff} offen{o} {flags}".rstrip())

    def iteration(issued, R, last, k=None):
        st = {"n": issued}
        lim = E if last else 10 ** 9
        while st["n"] < min(R, lim):
            issue(st["n"]); st["n"] += 1
        def before(e): a(f"  s_waitcnt vmcnt({3 * (st['n'] - e - 1)})")
        def after(e):
            while st["n"] < min(e + 1 + R, lim):
                assert st["n"] - E <= e
                if k is not None and k < 3 * (st["n"] - e - 1): a(f"  s_waitcnt vmcnt({k})")
                issue(st["n"]); st["n"] += 1
        for g in range(G):
            before(g)
            for j in range(12):
                src2 = "0" if j == 0 else f"v{vS+g}"
                a(f"  v_dot2_f32_bf16 v{vS+g}, v{vK+12*g+j}, v{vQ+j}, {src2}")
            after(g)
        a("  s_nop 1")
        for dpp in ("quad_perm:[1,0,3,2]", "quad_perm:[2,3,0,1]", "row_half_mirror"):
            for g in range(G):
                a(f"  v_add_f32_dpp v{vS+g}, v{vS+g}, v{vS+g} {dpp} row_mask:0xf bank_mask:0xf")
            if G < 3: a(f"  s_nop {2-G}")
        a(f"  v_mov_b32 v2, v{vM}")
        g = 0
        while g < G:
            if g + 1 < G:
                a(f"  v_max3_f32 v{vM}, v{vM}, v{vS+g}, v{vS+g+1}"); g += 2
            else:
                a(f"  v_max_f32 v{vM}, v{vM}, v{vS+g}"); g += 1
        a(f"  v_mul_f32 v{vMc}, s{sC}, v{vM}")
        a(f"  v_fma_f32 v{vAl}, v2, s{sC}, -v{vMc}")
        for g in range(G): a(f"  v_fma_f32 v{vS+g}, v{vS+g}, s{sC}, -v{vMc}")
        a(f"  v_exp_f32 v{vAl}, v{vAl}")
        for g in range(G): a(f"  v_exp_f32 v{vS+g}, v{vS+g}")
        a("  s_nop 0")
        a(f"  v_fma_f32 v{vL}, v{vL}, v{vAl}, v{vS}")
        for i in range(12):
            a(f"  v_pk_mul_f32 v[{vAcc+2*i}:{vAcc+2*i+1}], v[{vAcc+2*i}:{vAcc+2*i+1}], v[{vAl}:{vAl+1}] op_sel_hi:[1,0]")
        for g in range(1, G): a(f"  v_add_f32 v{vL}, v{vL}, v{vS+g}")
        for g in range(G):
            before(G + g)
            p = vS + g
            pe = p & ~1
            sel = "op_sel_hi:[1,0,1]" if p == pe else "op_sel:[0,1,0] op_sel_hi:[1,1,1]"
            for j in range(12):
                t = 2 + 2 * (j & 1)
                r = vV + 12 * g + j
                a(f"  v_lshlrev_b32 v{t}, 16, v{r}")
                a(f"  v_and_b32 v{t+1}, 0xffff0000, v{r}")
                a(f"  v_pk_fma_f32 v[{vAcc+2*j}:{vAcc+2*j+1}], v[{t}:{t+1}], v[{pe}:{pe+1}], v[{vAcc+2*j}:{vAcc+2*j+1}] {sel}")
            after(G + g)
        return st["n"] - E

    def init_state():
        a(f"  s_mov_b32 s{sC}, 0x{f2u(SCALE):08x}")
        a(f"  v_mov_b32 v{vM}, 0xff800000")
        a(f"  v_mov_b32 v{vL}, 0")
        for i in range(24): a(f"  v_mov_b32 v{vAcc+i}, 0")
    def body(phases, tag):
        issued = 0
        R0 = phases[0][0]
        while issued < R0:
            issue(issued); issued += 1
        init_state()
        nl = 0
        for pi, (R, n, k) in enumerate(phases):
            final = pi == len(phases) - 1
            nlast = 1 if (final and peel) else 0
            n -= nlast
            if n > 0 and issued > R:
                issued = iteration(issued, R, False, k)
                a(f"  s_add_u32 s{sBase}, s{sBase}, {istride}")
                n -= 1
            if n > 0:
                while issued < R:
                    issue(issued); issued += 1
                assert issued == R
                if n > 1:
                    a(f"  s_mov_b32 s{sCnt}, {n}")
                    a(".p2align 3")
                    a(f"L_loop{tag}{nl}:")
                r = iteration(issued, R, False, k)
                assert r == R
                a(f"  s_add_u32 s{sBase}, s{sBase}, {istride}")
                if n > 1:
                    a(f"  s_sub_u32 s{sCnt}, s{sCnt}, 1")
                    a(f"  s_cmp_lg_u32 s{sCnt}, 0")
                    a(f"  s_cbranch_scc1 L_loop{tag}{nl}")
                    nl += 1
            if nlast:
                issued = iteration(issued, R, True, k)
    if phases2:
        fixed2 = sum(p[1] for p in phases2)
        phases2 = [(r, n if n else N - fixed2, k) for r, n, k in phases2]
        a("  s_getreg_b32 s33, hwreg(HW_REG_XCC_ID)")
        a(f"  s_and_b32 s33, s33, {xmask}")
        a("  s_cmp_lg_u32 s33, 0")
        a("  s_cbranch_scc1 L_pathB")
        body(phases, "a")
        a("  s_branch L_epi")
        a("L_pathB:")
        body(phases2, "b")
        a("L_epi:")
    else:
        body(phases, "a")
    if stamp:
        a("  s_memrealtime s[36:37]")
        a("  s_load_dwordx2 s[38:39], s[0:1], 40")
        a("  s_getreg_b32 s35, hwreg(HW_REG_XCC_ID)")
        a("  s_waitcnt lgkmcnt(0)")
        a("  s_getreg_b32 s37, hwreg(HW_REG_HW_ID)")
        a(f"  s_mul_i32 s21, s2, {W}")
        a(f"  s_add_u32 s21, s21, s{sW}")
        a("  s_lshl_b32 s21, s21, 4")
        a("  v_mov_b32 v2, s34")
        a("  v_mov_b32 v3, s36")
        a("  v_mov_b32 v4, s35")
        a("  v_mov_b32 v5, s37")
        a(f"  v_mov_b32 v{vAl}, s21")
        a("  v_and_b32 v9, 63, v0")
        a("  v_cmp_eq_u32 vcc, 0, v9")
        a("  s_and_saveexec_b64 s[32:33], vcc")
        a(f"  global_store_dwordx4 v{vAl}, v[2:5], s[38:39]")
        a("  s_mov_b64 exec, s[32:33]")
        a("  s_nop 1")
    if not peel: a("  s_waitcnt vmcnt(0)")
    a(f"  v_mov_b32 v2, v{vM}")
    a("  s_nop 1")
    a("  v_max_f32_dpp v2, v2, v2 row_ror:8 row_mask:0xf bank_mask:0xf")
    a("  s_nop 0")
    a("  v_mov_b32 v3, v2")
    a("  s_nop 1")
    a("  v_permlane16_swap_b32 v2, v3")
    a("  s_nop 0")
    a("  v_max_f32 v2, v2, v3")
    a("  v_mov_b32 v3, v2")
    a("  s_nop 1")
    a("  v_permlane32_swap_b32 v2, v3")
    a("  s_nop 0")
    a("  v_max_f32 v2, v2, v3")
    a(f"  v_sub_f32 v3, v{vM}, v2")
    a(f"  v_mul_f32 v{vAl}, s{sC}, v3")
    a(f"  v_exp_f32 v{vAl}, v{vAl}")
    a(f"  v_mov_b32 v{vM}, v2")
    a(f"  v_mul_f32 v{vL}, v{vL}, v{vAl}")
    for i in range(12):
        a(f"  v_pk_mul_f32 v[{vAcc+2*i}:{vAcc+2*i+1}], v[{vAcc+2*i}:{vAcc+2*i+1}], v[{vAl}:{vAl+1}] op_sel_hi:[1,0]")
    a(f"  v_add_f32_dpp v{vL}, v{vL}, v{vL} row_ror:8 row_mask:0xf bank_mask:0xf")
    A = lambda c, e: vAcc + 8 * c + e
    for c in range(3):
        for e in range(4): a(f"  v_permlane32_swap_b32 v{A(c,e)}, v{A(c,e+4)}")
    a(f"  v_mov_b32 v3, v{vL}")
    for c in range(3):
        for e in range(4): a(f"  v_add_f32 v{A(c,e)}, v{A(c,e)}, v{A(c,e+4)}")
    a(f"  v_permlane16_swap_b32 v{vL}, v3")
    for c in range(3):
        for e in range(2): a(f"  v_permlane16_swap_b32 v{A(c,e)}, v{A(c,e+2)}")
    a(f"  v_add_f32 v{vL}, v{vL}, v3")
    for c in range(3):
        for e in range(2): a(f"  v_add_f32 v{A(c,e)}, v{A(c,e)}, v{A(c,e+2)}")
    a(f"  v_mov_b32 v3, v{vL}")
    for c in range(3):
        a(f"  v_add_f32_dpp v{A(c,0)}, v{A(c,0)}, v{A(c,0)} row_ror:8 row_mask:0xf bank_mask:0x3")
    a(f"  v_permlane32_swap_b32 v{vL}, v3")
    for c in range(3):
        a(f"  v_add_f32_dpp v{A(c,0)}, v{A(c,1)}, v{A(c,1)} row_ror:8 row_mask:0xf bank_mask:0xc")
    a(f"  v_add_f32 v{vL}, v{vL}, v3")
    a(f"  v_mov_b32 v5, s23")
    for c in range(3):
        a(f"  ds_write_b32 v{vLds}, v{A(c,0)} offset:{c*256}")
    a(f"  ds_write_b64 v5, v[{vM}:{vM+1}] offset:{192*4}")
    a("  s_waitcnt lgkmcnt(0)")
    a("  s_barrier")
    a("  v_cmp_gt_u32 vcc, 96, v0")
    a("  s_and_saveexec_b64 s[22:23], vcc")
    a("  s_cbranch_execz L_end")
    a("  v_mov_b32 v1, 0")
    a("  v_lshlrev_b32 v4, 3, v0")
    R = 12
    for w in range(W):
        a(f"  ds_read_b64 v[{R+4*w}:{R+4*w+1}], v1 offset:{w*196*4+192*4}")
    for w in range(W):
        a(f"  ds_read_b64 v[{R+4*w+2}:{R+4*w+3}], v4 offset:{w*196*4}")
    a(f"  s_mul_i32 s22, s2, {ROWB}")
    a(f"  s_add_u32 s{sQ}, s30, s22")
    a(f"  s_addc_u32 s{sQ+1}, s31, 0")
    a(f"  s_and_b32 s{sQ+1}, s{sQ+1}, 0xffff")
    a(f"  v_lshlrev_b32 v4, 2, v0")
    a(f"  s_waitcnt lgkmcnt({W})")
    a(f"  v_mov_b32 v2, v{R}")
    for w in range(1, W): a(f"  v_max_f32 v2, v2, v{R+4*w}")
    for w in range(W): a(f"  v_sub_f32 v{R+4*w}, v{R+4*w}, v2")
    for w in range(W): a(f"  v_mul_f32 v{R+4*w}, s{sC}, v{R+4*w}")
    for w in range(W): a(f"  v_exp_f32 v{R+4*w}, v{R+4*w}")
    a("  s_waitcnt lgkmcnt(0)")
    a(f"  v_mul_f32 v6, v{R}, v{R+1}")
    a(f"  v_mul_f32 v8, v{R}, v{R+2}")
    a(f"  v_mul_f32 v9, v{R}, v{R+3}")
    for w in range(1, W):
        a(f"  v_fma_f32 v6, v{R+4*w}, v{R+4*w+1}, v6")
        a(f"  v_fma_f32 v8, v{R+4*w}, v{R+4*w+2}, v8")
        a(f"  v_fma_f32 v9, v{R+4*w}, v{R+4*w+3}, v9")
    a("  v_rcp_f32 v6, v6")
    a("  s_nop 0")
    a("  v_mul_f32 v8, v8, v6")
    a("  v_mul_f32 v9, v9, v6")
    a("  v_cvt_pk_bf16_f32 v8, v8, v9")
    a(f"  buffer_store_dword v8, v4, s[{sQ}:{sQ+3}], 0 offen")
    a("L_end:")
    a("  s_endpgm")
    a('.section .rodata,"a"')
    a(".p2align 6")
    a(f".amdhsa_kernel {NAME}")
    a(f"  .amdhsa_next_free_vgpr {nv}")
    a(f"  .amdhsa_next_free_sgpr {sgprs}")
    a(f"  .amdhsa_accum_offset {nv}")
    a("  .amdhsa_group_segment_fixed_size 0")
    a("  .amdhsa_kernarg_size 48")
    a("  .amdhsa_user_sgpr_count 2")
    a("  .amdhsa_user_sgpr_kernarg_segment_ptr 1")
    a("  .amdhsa_system_sgpr_workgroup_id_x 1")
    a(".end_amdhsa_kernel")
    return a.text(), dict(grid=NH, block=64 * W, lds=lds, nv=nv)

if __name__ == "__main__":
    ap = argparse.ArgumentParser()
    ap.add_argument("-o", required=True)
    ap.add_argument("-W", type=int, default=4)
    ap.add_argument("-G", type=int, default=4)
    ap.add_argument("--ph", default="3:0", help="ring:iters[,ring:iters...]; iters 0 = remainder")
    ap.add_argument("--flags", default="nt")
    ap.add_argument("--ldsmin", type=int, default=90000)
    ap.add_argument("--stamp", action="store_true")
    ap.add_argument("--contig", action="store_true")
    ap.add_argument("--nopeel", action="store_true")
    ap.add_argument("--ph2", default=None)
    x = ap.parse_args()
    def pp(t):
        out = []
        for p in t.split(","):
            r, n = p.split(":")
            r, _, k = r.partition("k")
            out.append((int(r), int(n), int(k) if k else None))
        return out
    ph = pp(x.ph)
    ph2 = pp(x.ph2) if x.ph2 else None
    t, info = gen(W=x.W, G=x.G, phases=ph, flags=x.flags, ldsmin=x.ldsmin, stamp=x.stamp, contig=x.contig, peel=not x.nopeel, phases2=ph2)
    open(x.o, "w").write(t)
    print(x.o, info)
```

```python
import math, argparse, struct

NAME = "standalone__softmax_full_bidir__sampling_kernel"
NH, SK, DH = 256, 4096, 192
ROWB = DH * 2
HEADB = SK * ROWB
GRPB = 8 * ROWB
SCALE = (DH ** -0.5) * math.log2(math.e)

def f2u(f): return struct.unpack("<I", struct.pack("<f", f))[0]

class Asm:
    def __init__(self): self.l = []
    def __call__(self, s=""):
        for x in s.split("\n"): self.l.append(x)
    def text(self): return "\n".join(self.l) + "\n"

def gen(W=4, G=4, phases=((3, 0),), flags="nt", ldsmin=90000, stamp=False, contig=False, newepi=True, peel=True, sgprs=40, phases2=None, xmask=1, onestream=False, stflags='', perload=False, rot=None, rotv=0):
    E = 2 * G
    ntile = SK // (8 * G)
    assert ntile % W == 0
    N = ntile // W
    tileb = 8 * G * ROWB
    wstride, istride = (N * tileb, tileb) if contig else (tileb, W * tileb)
    if onestream: istride *= 2
    fixed = sum(n for _, n, _k in phases)
    phases = [(r, n if n else N - fixed, k) for r, n, k in phases]
    assert sum(p[1] for p in phases) == N and all(p[1] > 0 for p in phases)
    assert all(1 <= p[0] <= E for p in phases)
    a = Asm()
    vOff = 1
    vM, vL, vAl, vMc = 6, 7, 8, 9
    vS = 10
    vQ = (vS + G + 3) // 4 * 4
    vAcc = vQ + 12
    vK = vAcc + 24
    vV = vK + 12 * G
    vEnd = vV + 12 * G
    vLds = vEnd
    nv = max(vEnd + 1, vK + 26, 12 + 4 * W + 4)
    nv = (nv + 7) // 8 * 8
    lds = max(W * 196 * 4, ldsmin)
    sK, sV, sQ = 4, 8, 12
    sBase, sOff, sCnt, sC, sW = 16, 17, 18, 19, 20
    a(f"; @launch grid=({NH},1,1) block=({64*W},1,1) lds={lds}")
    a('.amdgcn_target "amdgcn-amd-amdhsa--gfx950"')
    a(".text")
    a(f".globl {NAME}")
    a(".p2align 8")
    a(f".type {NAME},@function")
    a(f"{NAME}:")
    a(f"  s_cmp_ge_u32 s2, {NH}")
    a("  s_cbranch_scc1 L_end")
    a("  s_load_dwordx4 s[24:27], s[0:1], 0")
    a("  s_load_dwordx4 s[28:31], s[0:1], 16")
    if stamp: a("  s_memrealtime s[34:35]")
    a("  v_lshrrev_b32 v2, 6, v0")
    a("  v_and_b32 v3, 63, v0")
    a(f"  v_readfirstlane_b32 s{sW}, v2")
    a("  v_lshrrev_b32 v4, 3, v3")
    a("  v_and_b32 v5, 7, v3")
    a(f"  v_lshlrev_b32 v2, 5, v5")
    a(f"  v_lshl_add_u32 v{vLds}, v4, 2, v2")
    a(f"  v_mul_u32_u24 v4, {ROWB}, v4")
    a("  v_lshlrev_b32 v5, 4, v5")
    a(f"  v_add_u32 v{vOff}, v4, v5")
    a(f"  s_mul_i32 s21, s2, {HEADB}")
    a(f"  s_mul_i32 s{sBase}, s{sW}, {wstride}")
    a(f"  s_mul_i32 s22, s2, {ROWB}")
    a(f"  s_mul_i32 s23, s{sW}, {196*4}")
    a(f"  v_add_u32 v{vLds}, s23, v{vLds}")
    a(f"  s_mov_b32 s{sK+2}, {HEADB}")
    a(f"  s_mov_b32 s{sK+3}, 0x00020000")
    a(f"  s_mov_b32 s{sV+2}, {HEADB}")
    a(f"  s_mov_b32 s{sV+3}, 0x00020000")
    a(f"  s_mov_b32 s{sQ+2}, {ROWB}")
    a(f"  s_mov_b32 s{sQ+3}, 0x00020000")
    a("  s_waitcnt lgkmcnt(0)")
    a(f"  s_add_u32 s{sQ}, s24, s22")
    a(f"  s_addc_u32 s{sQ+1}, s25, 0")
    a(f"  s_and_b32 s{sQ+1}, s{sQ+1}, 0xffff")
    a(f"  s_add_u32 s{sK}, s26, s21")
    a(f"  s_addc_u32 s{sK+1}, s27, 0")
    a(f"  s_and_b32 s{sK+1}, s{sK+1}, 0xffff")
    for c in range(3):
        off = f" offset:{c*128}" if c else ""
        a(f"  buffer_load_dwordx4 v[{vQ+4*c}:{vQ+4*c+3}], v5, s[{sQ}:{sQ+3}], 0 offen{off}")
    a(f"  s_add_u32 s{sV}, s28, s21")
    a(f"  s_addc_u32 s{sV+1}, s29, 0")
    a(f"  s_and_b32 s{sV+1}, s{sV+1}, 0xffff")

    sNxt, sBaseV, sNxtV = 33, 36, 37
    def wrapadd(dst, src, inc):
        a(f"  s_add_u32 s{dst}, s{src}, {inc}")
        a(f"  s_sub_u32 s32, s{dst}, {HEADB}")
        a(f"  s_cmp_ge_u32 s{dst}, {HEADB}")
        a(f"  s_cselect_b32 s{dst}, s32, s{dst}")
    def advance():
        if rot is None:
            a(f"  s_add_u32 s{sBase}, s{sBase}, {istride}")
        else:
            a(f"  s_mov_b32 s{sBase}, s{sNxt}")
            a(f"  s_mov_b32 s{sBaseV}, s{sNxtV}")
            wrapadd(sNxt, sNxt, istride)
            wrapadd(sNxtV, sNxtV, istride)
    if rot is not None:
        if rot >= 0:
            a(f"  s_mul_i32 s32, s2, {rot}")
        else:
            a("  s_load_dwordx2 s[38:39], s[0:1], 32")
            a("  s_waitcnt lgkmcnt(0)")
            a("  s_load_dword s38, s[38:39], 32")
            a("  s_waitcnt lgkmcnt(0)")
            a("  s_and_b32 s39, s38, 0xff")
            a("  s_mul_i32 s32, s2, s39")
            a("  s_bfe_u32 s39, s38, 0x80008")
            a("  s_lshr_b32 s37, s2, 3")
            a("  s_mul_i32 s39, s39, s37")
            a("  s_add_u32 s32, s32, s39")
            a("  s_bfe_u32 s39, s38, 0x80010")
            a("  s_and_b32 s37, s2, 7")
            a("  s_mul_i32 s39, s39, s37")
            a("  s_add_u32 s32, s32, s39")
        a(f"  s_add_u32 s32, s32, s{sW}")
        a(f"  s_and_b32 s32, s32, {ntile - 1}")
        a(f"  s_mul_i32 s{sBase}, s32, {tileb}")
        wrapadd(sBaseV, sBase, W * tileb if onestream else rotv * tileb)
        wrapadd(sNxt, sBase, istride)
        wrapadd(sNxtV, sBaseV, istride)
    def issue(ev, kk=None):
        nxt, e = divmod(ev, E)
        srd, reg, g = (sK, vK, e) if e < G else (sV, vV, e - G)
        off = g * GRPB + nxt * istride
        if onestream:
            srd = sK
            if e >= G: off += W * tileb
        if rot is None:
            a(f"  s_add_u32 s{sOff}, s{sBase}, 0x{off:x}")
        else:
            isv = e >= G
            base = (sNxtV if isv else sNxt) if nxt else (sBaseV if isv else sBase)
            a(f"  s_add_u32 s{sOff}, s{base}, 0x{g * GRPB:x}")
        for c in range(3):
            r = reg + 12 * g + 4 * c
            o = f" offset:{c*128}" if c else ""
            if perload and kk is not None: a(f"  s_waitcnt vmcnt({kk})")
            a(f"  buffer_load_dwordx4 v[{r}:{r+3}], v{vOff}, s[{srd}:{srd+3}], s{sOff} offen{o} {flags}".rstrip())

    def iteration(issued, R, last, k=None):
        st = {"n": issued}
        lim = E if last else 10 ** 9
        while st["n"] < min(R, lim):
            issue(st["n"]); st["n"] += 1
        def before(e): a(f"  s_waitcnt vmcnt({3 * (st['n'] - e - 1)})")
        def after(e):
            while st["n"] < min(e + 1 + R, lim):
                assert st["n"] - E <= e
                if not perload and k is not None and k < 3 * (st["n"] - e - 1): a(f"  s_waitcnt vmcnt({k})")
                issue(st["n"], k); st["n"] += 1
        for g in range(G):
            before(g)
            for j in range(12):
                src2 = "0" if j == 0 else f"v{vS+g}"
                a(f"  v_dot2_f32_bf16 v{vS+g}, v{vK+12*g+j}, v{vQ+j}, {src2}")
            after(g)
        a("  s_nop 1")
        for dpp in ("quad_perm:[1,0,3,2]", "quad_perm:[2,3,0,1]", "row_half_mirror"):
            for g in range(G):
                a(f"  v_add_f32_dpp v{vS+g}, v{vS+g}, v{vS+g} {dpp} row_mask:0xf bank_mask:0xf")
            if G < 3: a(f"  s_nop {2-G}")
        a(f"  v_mov_b32 v2, v{vM}")
        g = 0
        while g < G:
            if g + 1 < G:
                a(f"  v_max3_f32 v{vM}, v{vM}, v{vS+g}, v{vS+g+1}"); g += 2
            else:
                a(f"  v_max_f32 v{vM}, v{vM}, v{vS+g}"); g += 1
        a(f"  v_mul_f32 v{vMc}, s{sC}, v{vM}")
        a(f"  v_fma_f32 v{vAl}, v2, s{sC}, -v{vMc}")
        for g in range(G): a(f"  v_fma_f32 v{vS+g}, v{vS+g}, s{sC}, -v{vMc}")
        a(f"  v_exp_f32 v{vAl}, v{vAl}")
        for g in range(G): a(f"  v_exp_f32 v{vS+g}, v{vS+g}")
        a("  s_nop 0")
        a(f"  v_fma_f32 v{vL}, v{vL}, v{vAl}, v{vS}")
        for i in range(12):
            a(f"  v_pk_mul_f32 v[{vAcc+2*i}:{vAcc+2*i+1}], v[{vAcc+2*i}:{vAcc+2*i+1}], v[{vAl}:{vAl+1}] op_sel_hi:[1,0]")
        for g in range(1, G): a(f"  v_add_f32 v{vL}, v{vL}, v{vS+g}")
        for g in range(G):
            before(G + g)
            p = vS + g
            pe = p & ~1
            sel = "op_sel_hi:[1,0,1]" if p == pe else "op_sel:[0,1,0] op_sel_hi:[1,1,1]"
            for j in range(12):
                t = 2 + 2 * (j & 1)
                r = vV + 12 * g + j
                a(f"  v_lshlrev_b32 v{t}, 16, v{r}")
                a(f"  v_and_b32 v{t+1}, 0xffff0000, v{r}")
                a(f"  v_pk_fma_f32 v[{vAcc+2*j}:{vAcc+2*j+1}], v[{t}:{t+1}], v[{pe}:{pe+1}], v[{vAcc+2*j}:{vAcc+2*j+1}] {sel}")
            after(G + g)
        return st["n"] - E

    def init_state():
        a(f"  s_mov_b32 s{sC}, 0x{f2u(SCALE):08x}")
        a(f"  v_mov_b32 v{vM}, 0xff800000")
        a(f"  v_mov_b32 v{vL}, 0")
        for i in range(24): a(f"  v_mov_b32 v{vAcc+i}, 0")
    def body(phases, tag):
        issued = 0
        R0 = phases[0][0]
        while issued < R0:
            issue(issued); issued += 1
        init_state()
        nl = 0
        for pi, (R, n, k) in enumerate(phases):
            final = pi == len(phases) - 1
            if onestream and pi == 1:
                a(f"  s_mov_b32 s{sK}, s{sV}")
                a(f"  s_mov_b32 s{sK+1}, s{sV+1}")
                if rot is None:
                    a(f"  s_mul_i32 s{sBase}, s{sW}, {wstride}")
                    a(f"  s_sub_u32 s{sBase}, s{sBase}, {istride}")
            nlast = 1 if (final and peel) else 0
            n -= nlast
            if n > 0 and issued > R:
                issued = iteration(issued, R, False, k)
                advance()
                n -= 1
            if n > 0:
                while issued < R:
                    issue(issued); issued += 1
                assert issued == R
                if n > 1:
                    a(f"  s_mov_b32 s{sCnt}, {n}")
                    a(".p2align 3")
                    a(f"L_loop{tag}{nl}:")
                r = iteration(issued, R, False, k)
                assert r == R
                advance()
                if n > 1:
                    a(f"  s_sub_u32 s{sCnt}, s{sCnt}, 1")
                    a(f"  s_cmp_lg_u32 s{sCnt}, 0")
                    a(f"  s_cbranch_scc1 L_loop{tag}{nl}")
                    nl += 1
            if nlast:
                issued = iteration(issued, R, True, k)
    if phases2:
        fixed2 = sum(p[1] for p in phases2)
        phases2 = [(r, n if n else N - fixed2, k) for r, n, k in phases2]
        a("  s_getreg_b32 s33, hwreg(HW_REG_XCC_ID)")
        a(f"  s_and_b32 s33, s33, {xmask}")
        a("  s_cmp_lg_u32 s33, 0")
        a("  s_cbranch_scc1 L_pathB")
        body(phases, "a")
        a("  s_branch L_epi")
        a("L_pathB:")
        body(phases2, "b")
        a("L_epi:")
    else:
        body(phases, "a")
    if stamp:
        a("  s_memrealtime s[36:37]")
        a("  s_load_dwordx2 s[38:39], s[0:1], 40")
        a("  s_getreg_b32 s35, hwreg(HW_REG_XCC_ID)")
        a("  s_waitcnt lgkmcnt(0)")
        a("  s_getreg_b32 s37, hwreg(HW_REG_HW_ID)")
        a(f"  s_mul_i32 s21, s2, {W}")
        a(f"  s_add_u32 s21, s21, s{sW}")
        a("  s_lshl_b32 s21, s21, 4")
        a("  v_mov_b32 v2, s34")
        a("  v_mov_b32 v3, s36")
        a("  v_mov_b32 v4, s35")
        a("  v_mov_b32 v5, s37")
        a(f"  v_mov_b32 v{vAl}, s21")
        a("  v_and_b32 v9, 63, v0")
        a("  v_cmp_eq_u32 vcc, 0, v9")
        a("  s_and_saveexec_b64 s[32:33], vcc")
        a(f"  global_store_dwordx4 v{vAl}, v[2:5], s[38:39]")
        a("  s_mov_b64 exec, s[32:33]")
        a("  s_nop 1")
    if not peel: a("  s_waitcnt vmcnt(0)")
    a(f"  v_mov_b32 v2, v{vM}")
    a("  s_nop 1")
    a("  v_max_f32_dpp v2, v2, v2 row_ror:8 row_mask:0xf bank_mask:0xf")
    a("  s_nop 0")
    a("  v_mov_b32 v3, v2")
    a("  s_nop 1")
    a("  v_permlane16_swap_b32 v2, v3")
    a("  s_nop 0")
    a("  v_max_f32 v2, v2, v3")
    a("  v_mov_b32 v3, v2")
    a("  s_nop 1")
    a("  v_permlane32_swap_b32 v2, v3")
    a("  s_nop 0")
    a("  v_max_f32 v2, v2, v3")
    a(f"  v_sub_f32 v3, v{vM}, v2")
    a(f"  v_mul_f32 v{vAl}, s{sC}, v3")
    a(f"  v_exp_f32 v{vAl}, v{vAl}")
    a(f"  v_mov_b32 v{vM}, v2")
    a(f"  v_mul_f32 v{vL}, v{vL}, v{vAl}")
    for i in range(12):
        a(f"  v_pk_mul_f32 v[{vAcc+2*i}:{vAcc+2*i+1}], v[{vAcc+2*i}:{vAcc+2*i+1}], v[{vAl}:{vAl+1}] op_sel_hi:[1,0]")
    a(f"  v_add_f32_dpp v{vL}, v{vL}, v{vL} row_ror:8 row_mask:0xf bank_mask:0xf")
    A = lambda c, e: vAcc + 8 * c + e
    for c in range(3):
        for e in range(4): a(f"  v_permlane32_swap_b32 v{A(c,e)}, v{A(c,e+4)}")
    a(f"  v_mov_b32 v3, v{vL}")
    for c in range(3):
        for e in range(4): a(f"  v_add_f32 v{A(c,e)}, v{A(c,e)}, v{A(c,e+4)}")
    a(f"  v_permlane16_swap_b32 v{vL}, v3")
    for c in range(3):
        for e in range(2): a(f"  v_permlane16_swap_b32 v{A(c,e)}, v{A(c,e+2)}")
    a(f"  v_add_f32 v{vL}, v{vL}, v3")
    for c in range(3):
        for e in range(2): a(f"  v_add_f32 v{A(c,e)}, v{A(c,e)}, v{A(c,e+2)}")
    a(f"  v_mov_b32 v3, v{vL}")
    for c in range(3):
        a(f"  v_add_f32_dpp v{A(c,0)}, v{A(c,0)}, v{A(c,0)} row_ror:8 row_mask:0xf bank_mask:0x3")
    a(f"  v_permlane32_swap_b32 v{vL}, v3")
    for c in range(3):
        a(f"  v_add_f32_dpp v{A(c,0)}, v{A(c,1)}, v{A(c,1)} row_ror:8 row_mask:0xf bank_mask:0xc")
    a(f"  v_add_f32 v{vL}, v{vL}, v3")
    a(f"  v_mov_b32 v5, s23")
    for c in range(3):
        a(f"  ds_write_b32 v{vLds}, v{A(c,0)} offset:{c*256}")
    a(f"  ds_write_b64 v5, v[{vM}:{vM+1}] offset:{192*4}")
    a("  s_waitcnt lgkmcnt(0)")
    a("  s_barrier")
    a("  v_cmp_gt_u32 vcc, 96, v0")
    a("  s_and_saveexec_b64 s[22:23], vcc")
    a("  s_cbranch_execz L_end")
    a("  v_mov_b32 v1, 0")
    a("  v_lshlrev_b32 v4, 3, v0")
    R = 12
    for w in range(W):
        a(f"  ds_read_b64 v[{R+4*w}:{R+4*w+1}], v1 offset:{w*196*4+192*4}")
    for w in range(W):
        a(f"  ds_read_b64 v[{R+4*w+2}:{R+4*w+3}], v4 offset:{w*196*4}")
    a(f"  s_mul_i32 s22, s2, {ROWB}")
    a(f"  s_add_u32 s{sQ}, s30, s22")
    a(f"  s_addc_u32 s{sQ+1}, s31, 0")
    a(f"  s_and_b32 s{sQ+1}, s{sQ+1}, 0xffff")
    a(f"  v_lshlrev_b32 v4, 2, v0")
    a(f"  s_waitcnt lgkmcnt({W})")
    a(f"  v_mov_b32 v2, v{R}")
    for w in range(1, W): a(f"  v_max_f32 v2, v2, v{R+4*w}")
    for w in range(W): a(f"  v_sub_f32 v{R+4*w}, v{R+4*w}, v2")
    for w in range(W): a(f"  v_mul_f32 v{R+4*w}, s{sC}, v{R+4*w}")
    for w in range(W): a(f"  v_exp_f32 v{R+4*w}, v{R+4*w}")
    a("  s_waitcnt lgkmcnt(0)")
    a(f"  v_mul_f32 v6, v{R}, v{R+1}")
    a(f"  v_mul_f32 v8, v{R}, v{R+2}")
    a(f"  v_mul_f32 v9, v{R}, v{R+3}")
    for w in range(1, W):
        a(f"  v_fma_f32 v6, v{R+4*w}, v{R+4*w+1}, v6")
        a(f"  v_fma_f32 v8, v{R+4*w}, v{R+4*w+2}, v8")
        a(f"  v_fma_f32 v9, v{R+4*w}, v{R+4*w+3}, v9")
    a("  v_rcp_f32 v6, v6")
    a("  s_nop 0")
    a("  v_mul_f32 v8, v8, v6")
    a("  v_mul_f32 v9, v9, v6")
    a("  v_cvt_pk_bf16_f32 v8, v8, v9")
    a(f"  buffer_store_dword v8, v4, s[{sQ}:{sQ+3}], 0 offen {stflags}".rstrip())
    a("L_end:")
    a("  s_endpgm")
    a('.section .rodata,"a"')
    a(".p2align 6")
    a(f".amdhsa_kernel {NAME}")
    a(f"  .amdhsa_next_free_vgpr {nv}")
    a(f"  .amdhsa_next_free_sgpr {sgprs}")
    a(f"  .amdhsa_accum_offset {nv}")
    a("  .amdhsa_group_segment_fixed_size 0")
    a("  .amdhsa_kernarg_size 48")
    a("  .amdhsa_user_sgpr_count 2")
    a("  .amdhsa_user_sgpr_kernarg_segment_ptr 1")
    a("  .amdhsa_system_sgpr_workgroup_id_x 1")
    a(".end_amdhsa_kernel")
    return a.text(), dict(grid=NH, block=64 * W, lds=lds, nv=nv)

if __name__ == "__main__":
    ap = argparse.ArgumentParser()
    ap.add_argument("-o", required=True)
    ap.add_argument("-W", type=int, default=4)
    ap.add_argument("-G", type=int, default=4)
    ap.add_argument("--ph", default="3:0", help="ring:iters[,ring:iters...]; iters 0 = remainder")
    ap.add_argument("--flags", default="nt")
    ap.add_argument("--ldsmin", type=int, default=90000)
    ap.add_argument("--stamp", action="store_true")
    ap.add_argument("--contig", action="store_true")
    ap.add_argument("--nopeel", action="store_true")
    ap.add_argument("--ph2", default=None)
    ap.add_argument("--onestream", action="store_true")
    ap.add_argument("--rot", type=int, default=None)
    ap.add_argument("--rotv", type=int, default=0)
    ap.add_argument("--perload", action="store_true")
    ap.add_argument("--stflags", default="")
    x = ap.parse_args()
    def pp(t):
        out = []
        for p in t.split(","):
            r, n = p.split(":")
            r, _, k = r.partition("k")
            out.append((int(r), int(n), int(k) if k else None))
        return out
    ph = pp(x.ph)
    ph2 = pp(x.ph2) if x.ph2 else None
    t, info = gen(W=x.W, G=x.G, phases=ph, flags=x.flags, ldsmin=x.ldsmin, stamp=x.stamp, contig=x.contig, peel=not x.nopeel, phases2=ph2, onestream=x.onestream, stflags=x.stflags, perload=x.perload, rot=x.rot, rotv=x.rotv)
    open(x.o, "w").write(t)
    print(x.o, info)
```
